```python
import torch

def _softmax(x, axis=-1):
    return torch.softmax(x, dim=axis)
def _gelu(x):
    return torch.nn.functional.gelu(x, approximate="tanh")
def _silu(x):
    return torch.nn.functional.silu(x)
def _sigmoid(x):
    return torch.sigmoid(x)
def _layernorm(x, axis=-1, eps=1e-5):
    m = x.mean(dim=axis, keepdim=True)
    v = x.var(dim=axis, keepdim=True, unbiased=False)
    return (x - m) / torch.sqrt(v + eps)
def _scatter_add(tgt, idx, src, axis=0):
    return tgt.clone().index_add_(axis, idx, src)
def _segment_sum(src, seg, n):
    out = torch.zeros((n,) + src.shape[1:], dtype=src.dtype)
    return out.index_add_(0, seg, src)
def _pad(x, pw):
    flat = tuple(v for pair in reversed(pw) for v in pair)
    return torch.nn.functional.pad(x, flat)

kernel_name = 'recurrent_scan__ssm_conv_h3__swiglu_ffn__prompt'

def setup_inputs():

    _w = (lambda a: (lambda t: t.to(torch.bfloat16) if t.is_floating_point() else t)(torch.as_tensor(a)))
    def _A_setup():
        B, S, D = 1, 2048, 448
        ks = 4
        return {
            "q": _w((lambda *s: torch.randn(*s, dtype=torch.bfloat16) * 0.05)(B, S, D)),
            "k": _w((lambda *s: torch.randn(*s, dtype=torch.bfloat16) * 0.2)(B, S, D)),
            "v": _w((lambda *s: torch.randn(*s, dtype=torch.bfloat16) * 0.2)(B, S, D)),
            "shift_k": _w((lambda *s: torch.randn(*s, dtype=torch.bfloat16) * 0.2)(D, ks) * 0.5),
            "ssm_k": _w((lambda *s: torch.randn(*s, dtype=torch.bfloat16) * 0.2)(D, S) * (1.0 / S ** 0.5)),
            "ssm_D": _w((lambda *s: torch.randn(*s, dtype=torch.bfloat16) * 0.2)(D)),
        }
    _A_in = _A_setup()

    def _B_setup():
        B, S, D, F = 1, 2048, 448, 1792
        return {
            "x": _w((lambda *s: torch.randn(*s, dtype=torch.bfloat16) * 0.05)(B, S, D)),
            "w_gate": _w((lambda *s: torch.randn(*s, dtype=torch.bfloat16) * 0.1)(D, F)),
            "w_up": _w((lambda *s: torch.randn(*s, dtype=torch.bfloat16) * 0.1)(D, F)),
            "w_down": _w((lambda *s: torch.randn(*s, dtype=torch.bfloat16) * 0.1)(F, D)),
        }
    _B_in = _B_setup()

    return {
        "A_q": _A_in["q"],
        "A_k": _A_in["k"],
        "A_v": _A_in["v"],
        "A_shift_k": _A_in["shift_k"],
        "A_ssm_k": _A_in["ssm_k"],
        "A_ssm_D": _A_in["ssm_D"],
        "B_x": _B_in["x"],
        "B_w_gate": _B_in["w_gate"],
        "B_w_up": _B_in["w_up"],
        "B_w_down": _B_in["w_down"],
    }

def reference(A_q, A_k, A_v, A_shift_k, A_ssm_k, A_ssm_D, B_x, B_w_gate, B_w_up, B_w_down):
    def _A_ref(q, k, v, shift_k, ssm_k, ssm_D):
        B, S, D = q.shape
        ks = shift_k.shape[-1]
        k_pad = _pad(k, ((0, 0), (ks - 1, 0), (0, 0)))
        k_shift = torch.zeros_like(k)
        for t in range(ks):
            k_shift = k_shift + k_pad[:, t:t + S, :] * shift_k[:, ks - 1 - t][None, None, :]
        kv = k_shift * v
        L = 2 * S
        kv_pad = _pad(kv, ((0, 0), (0, S), (0, 0)))
        kf_pad = _pad(ssm_k, ((0, 0), (0, S)))
        kv_f = (lambda x, axes=(-2,-1): torch.fft.rfft2(x.float(), dim=axes))(kv_pad[:, None, :, :], axes=(1, 2))
        kf_f = (lambda x, axes=(-2,-1): torch.fft.rfft2(x.float(), dim=axes))(kf_pad[:, None, :], axes=(1, 2))
        kf_f = (lambda x, *d: x.permute(*d))(kf_f, 1, 2, 0)
        y_f = kv_f * kf_f[None, :, :, :]
        y = (lambda x, s, axes=(-2,-1): torch.fft.irfft2(x, s=s, dim=axes).to(torch.bfloat16))(y_f, (1, L), axes=(1, 2))[:, 0, :S, :]
        y = y + kv * ssm_D[None, None, :]
        return q * y

    def _B_ref(x, w_gate, w_up, w_down):
        g = _silu(x @ w_gate)
        u = x @ w_up
        return (g * u) @ w_down

    x = A_q
    xn = _layernorm(x, axis=-1)
    s = _A_ref(xn, A_k, A_v, A_shift_k, A_ssm_k, A_ssm_D)
    g = _silu(_B_ref(xn, B_w_gate, B_w_up, B_w_down))
    return x + s * g
```

```python
import re
class Op:
    __slots__=('t','k','tag','need','cnt')
    def __init__(s,t,k,tag=None,need=None,cnt=True):
        s.t=t; s.k=k; s.tag=tag; s.need=need; s.cnt=cnt
def kind(t):
    m=t.split()[0]
    if m.endswith(':'): return 'label'
    if m.startswith('v_mfma'): return 'mfma'
    if m.startswith('v_'): return 'valu'
    if m.startswith('buffer_') or m.startswith('global_'): return 'vm'
    if m.startswith('ds_'): return 'ds'
    if m.startswith('s_load') or m.startswith('s_mem'): return 'smem'
    if m.startswith('s_'): return 'salu'
    return 'other'
def I(t,tag=None,cnt=True):
    return Op(t,kind(t),tag,None,cnt)
def L(text,tag=None,cnt=True):
    return [I(x.strip(),tag,cnt) for x in text.strip().split('\n') if x.strip() and not x.strip().startswith(';')]
def W(*tags):
    return Op('', 'wait', None, tags)
def regs(tok):
    tok=tok.strip().lstrip('-')
    m=re.fullmatch(r'([vas])\[(\d+):(\d+)\]',tok)
    if m: return {(m.group(1),i) for i in range(int(m.group(2)),int(m.group(3))+1)}
    m=re.fullmatch(r'([vas])(\d+)',tok)
    if m: return {(m.group(1),int(m.group(2)))}
    if tok=='vcc': return {('s','vcc')}
    if tok=='m0': return {('s','m0')}
    if tok=='exec': return {('s','exec')}
    return set()
TRANS=('v_exp_f32','v_log_f32','v_rcp_f32','v_rsq_f32','v_sqrt_f32')
def rw(op):
    t=op.t; parts=t.split(None,1); m=parts[0]
    if len(parts)<2: return set(),set(),[]
    ops=[x.strip().split()[0] for x in parts[1].split(',') if x.strip()]
    rs=[regs(x) for x in ops]
    U=lambda l:set().union(*l) if l else set()
    if op.k=='mfma': return rs[0],U(rs[1:]),rs
    if op.k=='valu':
        w=set(rs[0]); r=U(rs[1:])
        if m.startswith(('v_fmac','v_dot2c','v_permlane')) or ' dst_unused:UNUSED_PRESERVE' in t: r|=rs[0]
        if m.startswith('v_permlane'): w|=rs[1]
        if m.startswith('v_cndmask') and len(ops)==3: r|={('s','vcc')}
        return w,r,rs
    if op.k=='vm':
        if ' lds' in t: return set(),U(rs)|{('s','m0')},rs
        if '_load' in m: return rs[0],U(rs[1:]),rs
        return set(),U(rs),rs
    if op.k=='ds':
        if m.startswith('ds_read') or 'permute' in m or 'swizzle' in m: return rs[0],U(rs[1:]),rs
        return set(),U(rs),rs
    if op.k in('salu','smem'):
        if m.startswith(('s_cmp','s_cbranch','s_branch','s_nop','s_waitcnt','s_barrier','s_sleep','s_setprio')): return set(),U(rs),rs
        return rs[0],U(rs[1:]),rs
    return set(),set(),rs
def passes(t):
    return 8 if '32x32' in t else 4
def need_states(p,c):
    pw,pr,prs=p; cw,cr,crs=c
    return 0
def resolve(ops):
    out=[]; vm=[]; lg=[]
    done_vm=0; done_lg=0
    for op in ops:
        if op.k=='wait':
            nv=nl=None
            for tg in op.need:
                iv=max((i for i,x in enumerate(vm) if x==tg),default=None)
                il=max((i for i,x in enumerate(lg) if x==tg),default=None)
                assert iv is not None or il is not None, f'unknown tag {tg}'
                if iv is not None and iv>=done_vm:
                    n=len(vm)-1-iv; nv=n if nv is None else min(nv,n)
                if il is not None and il>=done_lg:
                    n=len(lg)-1-il; nl=n if nl is None else min(nl,n)
            s=''
            if nv is not None:
                nv=min(nv,63); s+=f' vmcnt({nv})'; done_vm=max(done_vm,len(vm)-nv)
            if nl is not None:
                nl=min(nl,15); s+=f' lgkmcnt({nl})'; done_lg=max(done_lg,len(lg)-nl)
            if s: out.append(I('s_waitcnt'+s))
            continue
        if op.k=='vm' and op.cnt: vm.append(op.tag)
        if op.k=='ds' and op.cnt: lg.append(op.tag)
        if op.t.startswith('s_waitcnt') and op.cnt:
            if 'vmcnt(0)' in op.t: done_vm=len(vm)
            if 'lgkmcnt(0)' in op.t: done_lg=len(lg)
        out.append(op)
    res=[]; hist=[]
    npad=0
    for op in out:
        if op.k in('label','other'):
            res.append(op); continue
        w,r,rs=rw(op); m=op.t.split()[0]
        need=0; d=0
        for (p,pw,pr,prs,st) in reversed(hist):
            if d>=20: break
            pm=p.t.split()[0]; n=0
            vw={x for x in pw if x[0] in 'va'}; sw={x for x in pw if x[0]=='s'}
            if p.k=='valu':
                if op.k=='mfma' and vw&r: n=max(n,2)
                if pm.startswith(TRANS) and op.k in('valu',) and vw&r: n=max(n,1)
                if op.k=='valu' and ('_dpp' in m or m.startswith('v_permlane')) and vw&r: n=max(n,2)
                if m.startswith(('v_readfirstlane','v_readlane')) and vw&r: n=max(n,1)
                if sw&r:
                    if op.k=='vm': n=max(n,5)
                    elif op.k=='valu': n=max(n,2)
                    elif op.k in('salu','smem'): n=max(n,2)
                if ('s','exec') in sw and op.k in('mfma','valu'): n=max(n,5)
            if p.k=='mfma':
                P=passes(p.t)
                if op.k=='mfma':
                    if pw&(rs[1]|rs[2]): n=max(n,P+4)
                    if pw&rs[3] and not(pw==rs[3] and passes(op.t)==P): n=max(n,P+2)
                    if pw&w and pw!=w: n=max(n,P+2)
                elif pw&(r|w): n=max(n,P+4)
                if op.k=='valu' and prs[3]&w: n=max(n,P-1)
            if p.k=='salu' and ('s','m0') in pw and ('s','m0') in r and op.k=='vm': n=max(n,1)
            if p.k=='vm' and ('store_dwordx4' in pm or 'store_dwordx3' in pm) and prs[0]&w: n=max(n,2)
            if n>d: need=max(need,n-d)
            d+=st
        if need:
            npad+=1
            nop=I(f's_nop {need-1}'); res.append(nop); hist.append((nop,set(),set(),[],need))
        res.append(op)
        st=1
        if m=='s_nop': st=int(op.t.split()[1])+1
        hist.append((op,w,r,rs,st))
        if len(hist)>40: hist=hist[-30:]
    return res,npad
def weave(main, fillers, per_gap, start=0):
    out=[]; fi=0
    for i,sl in enumerate(main):
        out.append(list(sl))
        if i>=start:
            n=per_gap(i) if callable(per_gap) else per_gap
            while n>0 and fi<len(fillers):
                f=fillers[fi]; fi+=1
                if isinstance(f,list): out[-1]+=f; n-=max(1,len([x for x in f if x.k!='wait']))
                else:
                    out[-1].append(f); n-= 0 if f.k=='wait' else 1
    return out, fillers[fi:]
def flat(x):
    o=[]
    for e in x:
        if isinstance(e,list): o+=flat(e)
        else: o.append(e)
    return o
def text(ops):
    return '\n'.join(('' if o.k=='label' else '  ')+o.t for o in ops)
```

```python
import sys
from fw import *
NAME='recurrent_scan__ssm_conv_h3__swiglu_ffn__prompt'
class C: pass
cfg=C(); cfg.stamps=False; cfg.limit=200000
for a in sys.argv[2:]:
    k,v=a.split('='); setattr(cfg,k,int(v))
def opt(k,d): return getattr(cfg,k,d)
CNT=0; STATS=0x2000; CS=0x6000; UR=0x10000; YW=0x200000; HW=0x400000; STAMP=0xC00000; WSN=0xD00000
SX,SK,SV,SSH,SHK,SD,SWG,SWU,SWD,SO,SDB,SWS=[f's[{4+4*i}:{7+4*i}]' for i in range(12)]
srd_off=[0,8,16,24,32,40,56,64,72,80,88,96]
srd_sz=[1835008,1835008,1835008,3584,1835008,896,1605632,1605632,1605632,1835008,256,WSN]
RING=1024; SLOT=24576; CV=RING+4*SLOT; HP=4640; UP=4224; CH=4*HP+2*UP; TS=CV+2*CH
assert TS+8320<=163840
sW,sRB,sFB,sTB,sCG='s52','s53','s54','s55','s56'
nst=[0]
def stamp(name=''):
    if not cfg.stamps: return []
    i=nst[0]; nst[0]+=1; assert i<15
    names.append(name)
    return [I(f's_memtime s[{72+2*i}:{73+2*i}]')]
names=[]
def stamp_store():
    if not cfg.stamps: return []
    o=L('s_memrealtime s[68:69]\ns_waitcnt lgkmcnt(0)\nv_mov_b32 v14, 0')
    for i in range(34): o+=L(f'v_writelane_b32 v14, s{68+i}, {i}')
    o+=L(f'''s_lshl_b32 s57, s2, 2
    s_add_u32 s57, s57, {sW}
    s_lshl_b32 s57, s57, 8
    s_add_u32 s57, s57, {STAMP}
    v_lshlrev_b32 v15, 2, v1
    buffer_store_dword v14, v15, {SWS}, s57 offen''')
    return o
uid=[0]
def poll_issue(vreg,srd,soff,tag): return [I(f'buffer_load_dword {vreg}, off, {srd}, {soff} sc1',tag)]
def poll_check(vreg,srd,soff,tag,target):
    uid[0]+=1; n=uid[0]
    o=[W(tag)] if tag else []
    if tag: o+=L(f'v_readfirstlane_b32 s57, {vreg}\ns_cmp_ge_u32 s57, {target}\ns_cbranch_scc1 Lok{n}')
    o+=L(f'''s_mov_b32 s58, {cfg.limit}
    Lsp{n}:
    buffer_load_dword {vreg}, off, {srd}, {soff} sc1
    s_waitcnt vmcnt(0)
    v_readfirstlane_b32 s57, {vreg}
    s_cmp_ge_u32 s57, {target}
    s_cbranch_scc1 Lok{n}
    s_sub_u32 s58, s58, 1
    s_cmp_lg_u32 s58, 0
    s_cbranch_scc1 Lsp{n}
    Lok{n}:''',cnt=False)
    return o
def signal(srd,soff,pre=[]):
    uid[0]+=1; n=uid[0]
    o=L(f's_cmp_lg_u32 {sW}, 0\ns_cbranch_scc1 Lsg{n}')+pre
    o+=L(f'''s_mov_b64 exec, 1
    v_mov_b32 v15, 1
    buffer_atomic_add v15, off, {srd}, {soff} sc1
    s_mov_b64 exec, -1
    Lsg{n}:''',cnt=False)
    return o
def dma(m0base,m0c,vaddr,srd,soff,off=0,tag=None,sc=''):
    o=f' offset:{off}' if off else ''
    return [I(f's_add_u32 m0, {m0base}, {m0c-off}'), I(f'buffer_load_dwordx4 {vaddr}, {srd}, {soff} offen{o}{sc} lds',tag)]

P=[]
P+=L('s_cmp_ge_u32 s2, 256\ns_cbranch_scc1 Lend')
if cfg.stamps: P+=L('s_memrealtime s[70:71]')
P+=stamp('entry')
for i in (0,6,7,11,10,1,2,3,4,5,8,9): P+=L(f's_load_dwordx2 s[{4+4*i}:{5+4*i}], s[0:1], {srd_off[i]}')
P+=L(f'''v_lshrrev_b32 v14, 6, v0
v_and_b32 v1, 63, v0
v_readfirstlane_b32 {sW}, v14
v_lshlrev_b32 v2, 4, v1
s_mov_b32 s7, 0x20000''')
for i in range(12):
    P+=L(f's_mov_b32 s{6+4*i}, {srd_sz[i]}')
    if i: P+=L(f's_mov_b32 s{7+4*i}, s7')
P+=L(f'''s_and_b32 s57, s2, 7
s_lshr_b32 s58, s2, 3
s_cmp_lt_u32 s2, 32
s_cbranch_scc1 Lhelper
s_sub_u32 s58, s58, 4
s_mul_i32 s59, s58, 37
s_lshr_b32 s59, s59, 8
s_mul_i32 s60, s59, 7
s_sub_u32 {sCG}, s58, s60
s_lshr_b32 s60, s57, 1
s_lshl_b32 s60, s60, 2
s_add_u32 {sRB}, s60, s59
s_and_b32 s57, s57, 1
s_mul_i32 s60, s57, 7
s_add_u32 {sFB}, s60, {sCG}
s_lshl_b32 s60, {sRB}, 1
s_add_u32 {sTB}, s60, s57''')
P+=L(f'''s_lshl_b32 s57, {sRB}, 7
s_lshl_b32 s58, {sW}, 5
s_add_u32 s57, s57, s58
s_movk_i32 s59, 896
v_lshrrev_b32 v14, 2, v1
v_add_u32 v14, s57, v14
v_lshrrev_b32 v15, 4, v1
v_xor_b32 v4, v15, v1
v_and_b32 v4, 3, v4
v_lshlrev_b32 v4, 4, v4
v_mad_u32_u24 v4, v14, s59, v4
v_add_u32 v5, 14336, v4
s_lshl_b32 s57, {sW}, 3
s_movk_i32 s59, 3584
v_lshlrev_b32 v6, 6, v15
v_xor_b32 v6, v6, v2
v_and_b32 v6, 0xff, v6
v_add_u32 v14, s57, v15
v_mad_u32_u24 v6, v14, s59, v6
s_lshl_b32 s57, {sFB}, 8
v_add_u32 v6, s57, v6
v_add_u32 v7, 14336, v6
s_lshl_b32 s60, {sW}, 11
s_mov_b32 s62, 0
s_waitcnt lgkmcnt(0)''')
def stage_dma(st):
    sl=RING+(st%4)*SLOT; tg=f'st{st}'
    o=[dma('s60',sl+8192,'v6',SWG,'s62',0,tg), dma('s60',sl,'v4',SX,'0',64*st,tg),
       dma('s60',sl+16384,'v6',SWU,'s62',0,tg), dma('s60',sl+1024,'v5',SX,'0',64*st,tg),
       dma('s60',sl+8192+1024,'v7',SWG,'s62',0,tg), dma('s60',sl+16384+1024,'v7',SWU,'s62',0,tg)+[I('s_add_u32 s62, s62, 114688')]]
    return o
P+=flat(stage_dma(0)+stage_dma(1))
P+=L(f'''s_lshl_b32 s57, {sTB}, 6
s_lshl_b32 s58, {sW}, 4
s_add_u32 s57, s57, s58
v_lshrrev_b32 v14, 3, v1
v_lshl_add_u32 v14, v14, 1, s57
s_lshl_b32 s61, {sCG}, 7
v_and_b32 v15, 0x70, v2
s_movk_i32 s59, 896
v_add_u32 v3, s61, v15
v_mad_u32_u24 v3, v14, s59, v3
s_lshl_b32 s57, {sCG}, 9
s_mov_b32 m0, 0
v_subrev_u32 v72, 2688, v3
v_subrev_u32 v73, 1792, v3''')
P+=L(f'''buffer_load_dwordx4 v2, {SSH}, s57 offen lds
buffer_load_dwordx4 v[28:31], v72, {SK}, 0 offen
buffer_load_dwordx4 v[32:35], v73, {SK}, 0 offen
buffer_load_dwordx4 v[36:39], v73, {SK}, 0 offen offset:896
buffer_load_dwordx4 v[40:43], v3, {SK}, 0 offen
buffer_load_dwordx4 v[44:47], v3, {SK}, 0 offen offset:896
buffer_load_dwordx4 v[48:51], v3, {SV}, 0 offen
buffer_load_dwordx4 v[52:55], v3, {SV}, 0 offen offset:896
buffer_load_dwordx4 v[24:27], v15, {SD}, s61 offen''','kvld')
P+=flat(stage_dma(2)+stage_dma(3))
P+=L(f'''v_and_b32 v14, 31, v1
v_lshrrev_b32 v15, 5, v1
v_lshrrev_b32 v8, 2, v14
v_xor_b32 v8, v8, v15
v_and_b32 v8, 3, v8
v_lshlrev_b32 v8, 4, v8
v_lshl_add_u32 v8, v14, 6, v8
v_xor_b32 v9, 32, v8
v_add_u32 v10, {2*SLOT}, v8
v_add_u32 v11, {2*SLOT}, v9
v_bfe_u32 v14, v1, 2, 2
v_lshl_add_u32 v12, v15, 3, v14
v_lshlrev_b32 v12, 8, v12
v_xor_b32 v14, {sW}, v14
v_lshl_add_u32 v12, v14, 6, v12
v_bfe_u32 v14, v1, 4, 1
v_lshl_add_u32 v12, v14, 5, v12
v_and_b32 v14, 3, v1
v_lshl_add_u32 v12, v14, 3, v12
v_add_u32 v13, {2*SLOT}, v12
s_mul_i32 s63, {sW}, 6144''')
def frag_reads(ks):
    st,s=divmod(ks,2); b=80+24*(ks%2); sl=st%4; hi=sl//2; so=RING+(sl%2)*SLOT
    xr=f'v{8+2*hi+s}'; wr=f'v{12+hi}'
    def w(m,ph): return I(f'ds_read_b64_tr_b16 v[{b+16+4*m+2*ph}:{b+17+4*m+2*ph}], {wr} offset:{so+8192+8192*m+(16*s+4*ph)*256}',f'w{m}_{ks}')
    def x(rt): return I(f'ds_read_b128 v[{b+4*rt}:{b+4*rt+3}], {xr} offset:{so+2048*rt}',f'x{rt}_{ks}')
    return [w(0,0),w(0,1),x(0),w(1,0),w(1,1),x(1),x(2),x(3)]
P+=[W('st0'),I('s_barrier')]+stamp('st0')+frag_reads(0)
kv=[W('kvld')]+L('v_and_b32 v14, 7, v1\nv_lshlrev_b32 v14, 6, v14')
kv+=[I(f'ds_read_b128 v[{56+4*i}:{59+4*i}], v14 offset:{16*i}','shw') for i in range(4)]
kv+=L(f'''v_and_b32 v15, 7, v1
v_mul_u32_u24 v15, 1040, v15
v_lshrrev_b32 v14, 3, v1
v_lshlrev_b32 v14, 2, v14
v_sub_u32 v15, v15, v14
s_lshl_b32 s57, {sW}, 5
s_sub_u32 s57, {TS+124}, s57
v_add_u32 v15, s57, v15''')+[W('shw')]
def unp(d,s,hi): return I(f'v_and_b32 v{d}, 0xffff0000, v{s}') if hi else I(f'v_lshlrev_b32 v{d}, 16, v{s}')
kv+=L('s_mov_b32 s64, 0xffff0000')
def unp(d,s,hi): return I(f'v_and_b32 v{d}, s64, v{s}') if hi else I(f'v_lshlrev_b32 v{d}, 16, v{s}')
for c in range(8):
    d,hi=divmod(c,2)
    for j in range(5): kv.append(unp(72+j,28+4*j+d,hi))
    for j in range(4):
        kv.append(unp(77,56+2*c+j//2,j%2))
        op='v_mul_f32' if j==0 else 'v_fmac_f32'
        kv+=L(f'{op} v79, v{76-j}, v77\n{op} v78, v{75-j}, v77')
    kv+=[unp(72,48+d,hi),unp(73,52+d,hi)]
    kv+=L(f'v_mul_f32 v78, v78, v72\nv_mul_f32 v79, v79, v73\nv_cvt_pk_bf16_f32 v{16+c}, v79, v78')
    kv.append(I(f'ds_write_b32 v15, v{16+c} offset:{128*c}','tw'))
kv+=L(f'''s_mul_i32 s57, {sW}, 2080
s_add_u32 s57, s57, {TS}
v_add_u32 v72, s57, v2
v_lshrrev_b32 v14, 3, v1
v_and_b32 v73, 0x70, v2
v_lshl_add_u32 v73, v14, 12, v73
s_lshl_b32 s57, {sCG}, 18
s_lshl_b32 s58, {sW}, 16
s_add_u32 s57, s57, s58
s_lshl_b32 s58, {sTB}, 7
s_sub_u32 s57, s57, s58
s_add_u32 s65, s57, {UR+31*128}
s_add_u32 s66, s65, 32768''')
kv2=[I('ds_read_b128 v[28:31], v72','tr'),I('ds_read_b128 v[32:35], v72 offset:1040','tr')]
kv2+=L(f'''s_lshr_b32 s57, {sW}, 1
s_mul_i32 s57, s57, {CH}
s_and_b32 s58, {sW}, 1
s_mul_i32 s59, s58, {2*HP}
s_add_u32 s67, s57, s59
v_lshrrev_b32 v14, 5, v1
v_mul_u32_u24 v14, {HP-512}, v14
v_add3_u32 v14, v14, v2, s67
v_mov_b32 v36, 0
v_mov_b32 v37, 0
v_mov_b32 v38, 0
v_mov_b32 v39, 0
v_add_u32 v14, {CV}, v14''')
kv2+=[I('ds_write_b128 v14, v[36:39]','hz'),W('tr')]
kv2+=L(f'''buffer_store_dwordx4 v[28:31], v73, {SWS}, s65 offen sc1
buffer_store_dwordx4 v[32:35], v73, {SWS}, s66 offen sc1''','ust')
kv2+=L('s_movk_i32 s59, 128')+poll_issue('v40',SDB,'s59','rdy')
kv2+=L(f'''s_lshl_b32 s57, {sCG}, 5
s_add_u32 s57, s57, {sTB}
s_lshl_b32 s57, s57, 1
s_lshr_b32 s59, {sW}, 1
s_add_u32 s57, s57, s59
s_lshl_b32 s65, s57, 12
s_lshl_b32 s58, s58, 3
s_sub_u32 s67, s67, s58''')+[W('hz')]
for cp in range(2):
    kv2.append([I(f's_add_u32 m0, s67, {CV+cp*HP+396-4*cp}'),I('s_nop 0'),I(f'buffer_load_dwordx4 v2, {SHK}, s65 offen lds','hd'),I(f'buffer_load_dwordx4 v2, {SHK}, s65 offen offset:1024 lds','hd')])
    kv2.append([I(f's_add_u32 m0, s67, {CV+cp*HP+396-4*cp}'),I('s_nop 0'),I(f'buffer_load_dwordx4 v2, {SHK}, s65 offen offset:2048 lds','hd'),I(f'buffer_load_dwordx4 v2, {SHK}, s65 offen offset:3072 lds','hd')])
kv2+=L(f'''s_mul_i32 s57, {sW}, 448
v_lshrrev_b32 v14, 3, v1
v_add_u32 v14, s57, v14
v_lshlrev_b32 v74, 2, v1
v_and_b32 v74, 64, v74
v_xor_b32 v74, v74, v2
v_and_b32 v74, 0x70, v74
s_movk_i32 s59, 896
v_add_u32 v74, s61, v74
v_mad_u32_u24 v74, v14, s59, v74
v_lshrrev_b32 v14, 5, v1
v_bfe_u32 v15, v1, 2, 2
v_lshl_add_u32 v75, v14, 2, v15
v_lshlrev_b32 v75, 7, v75
v_lshrrev_b32 v15, 1, v15
v_lshl_add_u32 v75, v15, 6, v75
v_bfe_u32 v14, v1, 4, 1
v_lshl_add_u32 v75, v14, 5, v75
v_and_b32 v14, 3, v1
v_lshl_add_u32 v75, v14, 3, v75
v_add_u32 v75, s63, v75
v_xor_b32 v76, 64, v75
v_add_u32 v77, {2*SLOT}, v75
v_add_u32 v78, {2*SLOT}, v76
s_mov_b32 s66, 0''')
kv2+=L(f'''v_and_b32 v14, 31, v1
s_lshl_b32 s57, {sRB}, 7
v_add_lshl_u32 v41, v14, s57, 3
s_lshl_b32 s57, {sFB}, 7
s_lshl_b32 s58, {sW}, 5
s_add_u32 s57, s57, s58
v_add_lshl_u32 v42, v14, s57, 3
s_and_b32 s58, {sW}, 1
s_lshl_b32 s59, s58, 1
s_sub_u32 s59, 2, s59
v_add_u32 v43, s59, v2
s_lshr_b32 s57, {sW}, 1
s_mul_i32 s57, s57, {CH}
s_mul_i32 s59, s58, {UP}
s_add_u32 s67, s57, s59
s_lshl_b32 s59, s58, 1
s_add_u32 s59, s59, s67
s_add_u32 s59, s59, {CV+4*HP+4094}
v_lshl_add_u32 v46, v1, 1, s59
s_lshl_b32 s58, s58, 8
s_add_u32 s57, s57, s58
s_add_u32 s57, s57, {CV}
v_lshrrev_b32 v14, 4, v1
v_lshl_add_u32 v14, v14, 4, s57
v_and_b32 v15, 1, v1
v_mul_u32_u24 v15, {UP}, v15
v_bfe_u32 v44, v1, 1, 3
v_lshlrev_b32 v44, 4, v44
v_sub_u32 v44, v15, v44
v_add_u32 v15, {4*HP+112}, v14
v_add_u32 v44, v44, v15
v_and_b32 v15, 3, v1
v_mul_u32_u24 v15, {HP}, v15
v_bfe_u32 v45, v1, 2, 2
v_lshlrev_b32 v45, 7, v45
v_add3_u32 v45, v45, v15, v14
s_add_u32 s65, s65, {UR}''')
def wd_dma(v):
    sl=RING+((v+2)%4)*SLOT; o=[]
    for i in range(6 if v<9 else 2):
        o.append(dma('s63',sl+1024*i,'v74',SWD,'s66',0,f'wd{v}')+[I('s_add_u32 s66, s66, 7168')])
    return o
def wd_read(v):
    sl=(v+2)%4; o=[W(f'wd{v}')]
    for s in range(3 if v<9 else 1):
        ks=3*v+s
        for ct in range(2):
            for ph in range(2):
                a=8*ks+4*ct+2*ph
                o.append(I(f'ds_read_b64_tr_b16 a[{a}:{a+1}], v{75+2*(sl//2)+ct} offset:{RING+(sl%2)*SLOT+(16*s+8*ph)*128}',f'wr{v}'))
    return o
slots=[]
KSIG=opt('ksig',10)
for ks in range(28):
    st,s=divmod(ks,2); b=80+24*(ks%2)
    rd=frag_reads(ks+1) if ks<27 else []
    S=[]
    for j in range(8):
        rt,m=divmod(j,2); a=128+32*rt+16*m
        pre=[]
        if j==0: pre=[W(f'w0_{ks}',f'x0_{ks}')]
        if j==1: pre=[W(f'w1_{ks}',f'x1_{ks}')]
        if j==4 and s==0: pre=[W(f'x3_{ks}')]
        c=f'v[{a}:{a+15}]' if ks else '0'
        S.append(pre+[I(f'v_mfma_f32_32x32x16_bf16 v[{a}:{a+15}], v[{b+16+4*m}:{b+19+4*m}], v[{b+4*rt}:{b+4*rt+3}], {c}')])
    if s==0:
        for j in range(8): S[j].append(rd[j])
    else:
        extra=[]
        if st==5: extra=['tw']
        if st==KSIG-1: extra=['ust']
        S[1]+=[W(f'x3_{ks}',*([f'st{st+1}'] if st<13 else []),*extra),I('s_barrier')]
        if st==KSIG-1:
            S[1]+=signal(SWS,'s59',L('s_movk_i32 s59, 128')+poll_check('v40',SDB,'s59','rdy',1)+L(f's_lshl_b32 s59, {sCG}, 8'))
        if rd:
            for j,r in zip((1,1,2,3,4,5,6,7),rd): S[j].append(r)
    slots+=S
for st in range(14):
    d=stage_dma(st+4) if st+4<14 else wd_dma(st-10)
    base=16*st+8
    pos=[2,4,6,9,11,13] if st<13 else [2,3,4,5,6,7]
    for p_,x in zip(pos,d): slots[base+p_]+=x
a_,rest=weave(slots[:16*5+9],kv,3,start=14); assert not rest; slots=a_+slots[16*5+9:]
a_,rest=weave(slots[:16*(KSIG-1)+9],kv2,3,start=16*5+10); assert not rest; slots=a_+slots[16*(KSIG-1)+9:]
slots[16*11+1]+=poll_issue('v40',SDB,'0','d1')
d1=poll_check('v40',SDB,'0','d1',32)+L(f's_movk_i32 s59, {STATS}')
d1+=[I(f'buffer_load_dwordx2 v[{28+2*rt}:{29+2*rt}], v41, {SWS}, s59 offen offset:{256*rt} sc1','stat') for rt in range(4)]
d1+=L(f's_movk_i32 s59, {CS}\nbuffer_load_dwordx2 v[36:37], v42, {SWS}, s59 offen sc1\ns_mov_b32 s59, {CS+14336}\nbuffer_load_dwordx2 v[38:39], v42, {SWS}, s59 offen sc1','stat')
d1+=L(f's_lshl_b32 s59, {sCG}, 8')+poll_issue('v40',SWS,'s59','pu')
slots[16*12+1]+=d1
P+=flat(slots)+stamp('g1end')
P+=[W('stat')]+L('v_cmp_gt_u32 vcc, 32, v1')
for rt in range(4):
    P+=L(f'''v_cndmask_b32 v{48+2*rt}, 0, v{28+2*rt}, vcc
    v_rcp_f32 v{57+2*rt}, v{29+2*rt}
    v_cndmask_b32 v{49+2*rt}, 0, v{28+2*rt}, vcc
    v_mul_f32 v{56+2*rt}, v{29+2*rt}, v{29+2*rt}
    v_mul_f32 v{57+2*rt}, 0xbfb8aa3b, v{57+2*rt}''')
for rt in range(4):
    for m in range(2):
        a=128+32*rt+16*m
        P+=L(f'v_mfma_f32_32x32x8_bf16 v[{a}:{a+15}], v[{36+2*m}:{37+2*m}], v[{48+2*rt}:{49+2*rt}], v[{a}:{a+15}]')
P+=L(f's_lshl_b32 s59, {sCG}, 8')+poll_check('v40',SWS,'s59','pu',32)
P+=L(f's_add_u32 m0, s67, {CV+4*HP}\ns_nop 0')
P+=[I(f'buffer_load_dwordx4 v43, {SWS}, s65 offen offset:{1024*i} sc1 lds','ud') for i in range(4)]
P+=L(f'''s_mul_i32 s57, {sRB}, 448
s_lshl_b32 s58, {sFB}, 3
s_add_u32 s57, s57, s58
s_lshl_b32 s58, {sW}, 1
s_add_u32 s57, s57, s58
s_lshl_b32 s57, s57, 10
s_add_u32 s62, s57, {HW}''')+stamp('corr')
def ep(n,step):
    if n<0 or n>=32: return []
    rt,i=divmod(n,8); G=128+32*rt+2*i; U=G+16; T=64+2*(n%3); cst=56+2*rt
    if step=='A': return L(f'v_pk_mul_f32 v[{T}:{T+1}], v[{G}:{G+1}], v[{cst}:{cst+1}] op_sel:[0,1] op_sel_hi:[1,1]')
    if step=='B': return L(f'v_exp_f32 v{T}, v{T}')
    if step=='C': return L(f'v_exp_f32 v{T+1}, v{T+1}')
    if step=='D': return L(f'v_pk_mul_f32 v[{G}:{G+1}], v[{G}:{G+1}], v[{U}:{U+1}]')
    if step=='E': return L(f'v_pk_fma_f32 v[{T}:{T+1}], v[{T}:{T+1}], v[{cst}:{cst+1}], v[{cst}:{cst+1}] op_sel:[0,0,0] op_sel_hi:[1,0,0]')
    if step=='F': return L(f'v_rcp_f32 v{T}, v{T}')
    if step=='G': return L(f'v_rcp_f32 v{T+1}, v{T+1}')
    if step=='H': return L(f'v_pk_mul_f32 v[{G}:{G+1}], v[{G}:{G+1}], v[{T}:{T+1}]')
    if step=='I':
        D=144+32*rt+i; o=L(f'v_cvt_pk_bf16_f32 v{D}, v{G}, v{G+1}')
        if i%4==3:
            o+=L(f'buffer_store_dwordx4 v[{D-3}:{D}], v2, {SWS}, s62 offen offset:{1024*(i//4)} sc1','hst')
            if i==7: o+=L('s_add_u32 s62, s62, 114688')
        return o
for n in range(-2,33):
    P+=ep(n,'E')+ep(n+1,'B')+ep(n+1,'D')+ep(n,'F')+ep(n+2,'A')+ep(n,'G')+ep(n-1,'I')+ep(n+1,'C')+ep(n,'H')
P+=stamp('epi')
P+=[W('ud','hd')]+L('v_mov_b32 v14, 0')+[I('ds_write_b16 v46, v14','uz'),W('uz'),I('s_barrier')]
P+=L('v_mov_b32 v28, v74\nv_mov_b32 v29, v75\nv_mov_b32 v30, v76\nv_mov_b32 v31, v77\nv_mov_b32 v32, v78')
def fixwd(ops):
    for o in flat(ops):
        for a,b_ in ((74,28),(75,29),(76,30),(77,31),(78,32)): o.t=o.t.replace(f' v{a},',f' v{b_},').replace(f' v{a} ',f' v{b_} ')
    return ops
FB=[(64,96),(128,160)]
def cv_reads(rr):
    A,B=FB[rr%2]; o=[]
    for i in range(8):
        o.append(I(f'ds_read_b128 v[{A+4*i}:{A+4*i+3}], v44 offset:{512*(7-i)+64*rr}',f'ca{rr}_{i}'))
        o.append(I(f'ds_read_b128 v[{B+4*i}:{B+4*i+3}], v45 offset:{512*i+64*rr}',f'ca{rr}_{i}'))
    return o
P+=cv_reads(0)
cs=[]
HS=opt('hsig',40)
for rr in range(4):
    A,B=FB[rr%2]; S=[]
    pairs=sorted([(p,q) for p in range(8) for q in range(8) if p+q<8],key=lambda x:(max(x),x))
    seen=set(); lastm=-1
    for (p,q) in pairs:
        pre=[]
        if max(p,q)>lastm: lastm=max(p,q); pre=[W(f'ca{rr}_{lastm}')]
        a=192+4*(p+q); c=f'v[{a}:{a+3}]' if (rr or (p+q) in seen) else '0'; seen.add(p+q)
        S.append(pre+[I(f'v_mfma_f32_16x16x32_bf16 v[{a}:{a+3}], v[{A+4*q}:{A+4*q+3}], v[{B+4*p}:{B+4*p+3}], {c}')])
    if rr<3:
        rd=cv_reads(rr+1)
        S,rest=weave(S,rd,lambda i:i%2,start=(4 if rr else 0)); assert not rest
    cs+=S
hs=[W('hst'),I('s_barrier')]+signal(SWS,'s59',L(f's_lshl_b32 s59, {sRB}, 8\ns_add_u32 s59, s59, {14*256}'))+stamp('hsig')
cs[HS]+=hs
wj=[]
for v in range(8):
    wj+=wd_read(v)
    if v+4<10: wj+=[W(f'wr{v}')]+wd_dma(v+4)
fixwd(wj)
cs,rest=weave(cs,wj,lambda i:2-(i%2),start=0)
P+=flat(cs)+flat(rest)+stamp('conv')
P+=L(f's_lshl_b32 s59, {sRB}, 8\ns_add_u32 s59, s59, {14*256}')+poll_issue('v40',SWS,'s59','ph')
P+=L(f'v_add_u32 v14, s63, v2')+[W('wr7')]
for t in range(8): P+=[I(f'ds_write_b128 v14, v[{192+4*t}:{195+4*t}] offset:{RING+(t//4)*SLOT+1024*(t%4)}','rw')]
P+=L(f'''s_lshr_b32 s57, {sW}, 1
s_mul_i32 s57, s57, {SLOT}
s_and_b32 s58, {sW}, 1
s_lshl_b32 s58, s58, 11
s_add_u32 s57, s57, s58
v_add_u32 v14, s57, v2
v_bfe_u32 v15, v1, 2, 2
v_mul_u32_u24 v15, 57344, v15
v_lshrrev_b32 v33, 4, v1
v_lshl_add_u32 v15, v33, 6, v15
v_and_b32 v33, 3, v1
v_lshl_add_u32 v33, v33, 4, v15
s_lshl_b32 s57, {sCG}, 5
s_add_u32 s57, s57, {sTB}
s_lshl_b32 s57, s57, 8
s_mul_i32 s58, {sW}, {8*57344}
s_add_u32 s57, s57, s58
s_add_u32 s65, s57, {YW}
s_add_u32 s66, s65, {4*57344}''')
P+=[W('rw'),I('s_barrier')]
for i in range(2):
    for wp in range(4): P+=[I(f'ds_read_b128 v[{192+16*i+4*wp}:{195+16*i+4*wp}], v14 offset:{RING+6144*wp+1024*i}',f'rr{i}')]
P+=fixwd(wd_read(8))
for i in range(2):
    b=192+16*i
    P+=[W(f'rr{i}')]+L(f'''v_pk_add_f32 v[{b}:{b+1}], v[{b}:{b+1}], v[{b+4}:{b+5}]
    v_pk_add_f32 v[{b+8}:{b+9}], v[{b+8}:{b+9}], v[{b+12}:{b+13}]
    v_pk_add_f32 v[{b+2}:{b+3}], v[{b+2}:{b+3}], v[{b+6}:{b+7}]
    v_pk_add_f32 v[{b+10}:{b+11}], v[{b+10}:{b+11}], v[{b+14}:{b+15}]''')
    for r in range(4): P+=L(f'v_cvt_pk_bf16_f32 v{48+4*i+r}, v{b+r}, v{b+8+r}')
    P+=L(f'buffer_store_dwordx4 v[{48+4*i}:{51+4*i}], v33, {SWS}, s{65+i} offen sc1','yst')
P+=fixwd(wd_read(9))
P+=L(f'''s_lshl_b32 s57, {sTB}, 9
s_lshl_b32 s58, {sW}, 7
s_add_u32 s57, s57, s58
s_add_u32 s57, s57, {STATS}
v_lshrrev_b32 v14, 3, v1
v_lshlrev_b32 v14, 4, v14''')+[W('wr9')]
P+=L(f'''buffer_load_dwordx4 v[36:39], v14, {SWS}, s57 offen sc1
buffer_load_dwordx4 v[28:31], v3, {SX}, 0 offen
buffer_load_dwordx4 v[32:35], v3, {SX}, 0 offen offset:896''','xt')
P+=L(f'''s_mul_i32 s57, {sTB}, 224
s_mul_i32 s58, {sW}, 28
s_add_u32 s57, s57, s58
s_lshl_b32 s57, s57, 10
s_add_u32 s65, s57, {HW}
s_add_u32 s66, s65, 114688''')+stamp('ypub')
P+=poll_check('v40',SWS,'s59','ph',14)+stamp('hrdy')
ND=opt('nd',24)
def hload(n):
    ks,tt=divmod(n,2); r=64+4*(n%32); o=[I(f'buffer_load_dwordx4 v[{r}:{r+3}], v2, {SWS}, s{65+tt} offen offset:{1024*(ks%4)} sc1',f'h{n}')]
    if ks%4==3: o.append(I(f's_add_u32 s{65+tt}, s{65+tt}, 4096'))
    return o
for n in range(ND): P+=hload(n)
g2=[]
for n in range(56):
    ks,tt=divmod(n,2); r=64+4*(n%32)
    for ct in range(2):
        a=192+32*tt+16*ct; c=f'v[{a}:{a+15}]' if ks else '0'
        S=([W(f'h{n}')] if ct==0 else [])+[I(f'v_mfma_f32_32x32x16_bf16 v[{a}:{a+15}], a[{8*ks+4*ct}:{8*ks+4*ct+3}], v[{r}:{r+3}], {c}')]
        if ct==0 and n+ND<56: S+=hload(n+ND)
        g2.append(S)
g2[1]+=[W('yst'),I('s_barrier')]+signal(SWS,'s59',L(f's_lshl_b32 s59, {sCG}, 8\ns_add_u32 s59, s59, {7*256}'))+stamp('ysig')
YP=opt('yp',36)
g2[YP]+=L(f's_lshl_b32 s59, {sCG}, 8\ns_add_u32 s59, s59, {7*256}')+poll_issue('v44',SWS,'s59','py')
pc=[W('xt')]+L('v_rcp_f32 v37, v37\nv_and_b32 v36, s64, v36\nv_rcp_f32 v39, v39\nv_and_b32 v38, s64, v38')
for i in range(2):
    for c in range(8):
        d=48+8*i+c
        pc+=[unp(d,28+4*i+c//2,c%2)]+L(f'v_add_f32 v{d}, v{d}, v{36+2*i}\nv_mul_f32 v{d}, v{d}, v{37+2*i}')
pc+=L(f'''v_bfe_u32 v14, v1, 2, 3
v_lshrrev_b32 v15, 5, v1
v_lshl_add_u32 v14, v14, 2, v15
v_and_b32 v45, 48, v2
v_lshl_add_u32 v45, v14, 8, v45
s_mul_i32 s57, {sTB}, 57344
s_lshl_b32 s58, {sCG}, 13
s_add_u32 s57, s57, s58
s_lshl_b32 s58, {sW}, 6
s_add_u32 s57, s57, s58
s_add_u32 s62, s57, {YW}
v_and_b32 v14, 7, v1
v_bfe_u32 v46, v1, 3, 2
v_lshlrev_b32 v46, 4, v46
v_lshl_add_u32 v46, v14, 6, v46
v_lshl_add_u32 v46, v15, 3, v46
s_add_u32 s57, s60, {TS}
v_add_u32 v46, s57, v46''')
pc+=L(f'''v_bfe_u32 v4, v1, 1, 1
v_and_b32 v14, 1, v1
v_lshl_add_u32 v4, v14, 1, v4
v_and_b32 v14, 4, v1
v_or_b32 v4, v4, v14
v_xor_b32 v4, v4, v15
v_lshlrev_b32 v4, 4, v4
v_and_b32 v14, 15, v1
v_lshl_add_u32 v4, v14, 8, v4
v_bfe_u32 v14, v1, 4, 1
v_mul_u32_u24 v14, {SLOT}, v14
v_add3_u32 v4, v4, v14, s63
v_xor_b32 v5, 32, v4
v_xor_b32 v6, 64, v4
v_xor_b32 v7, 0x60, v4''')
pc+=L(f'''v_bfe_u32 v8, v1, 3, 1
v_bfe_u32 v14, v1, 4, 1
v_lshl_add_u32 v8, v14, 2, v8
v_and_b32 v14, 7, v1
v_lshlrev_b32 v14, 1, v14
v_xor_b32 v8, v8, v14
v_lshlrev_b32 v8, 4, v8
v_lshrrev_b32 v14, 3, v1
v_lshl_add_u32 v8, v14, 9, v8
s_mul_i32 s57, {sW}, {SLOT}
v_add_u32 v8, s57, v8
v_xor_b32 v9, 16, v8
v_xor_b32 v10, 32, v8
v_xor_b32 v11, 48, v8''')
g2,rest=weave(g2,pc,3,start=2); assert not rest
YC=opt('yc',80)
g2[YC]+=L(f's_lshl_b32 s59, {sCG}, 8\ns_add_u32 s59, s59, {7*256}')+poll_check('v44',SWS,'s59','py',32)+dma('s60',TS,'v45',SWS,'s62',0,'yd',' sc1')+dma('s60',TS+1024,'v45',SWS,'s62',512,'yd',' sc1')
P+=flat(g2)+stamp('g2end')
pw=[]
for tt in range(2):
    for ct in range(2):
        for q in range(4):
            a=192+32*tt+16*ct+4*q
            pw.append([I(f'ds_write_b128 v{4+q}, v[{a}:{a+3}] offset:{RING+2*tt*SLOT+128*ct}','pw')])
zz=[W('yd')]+[I(f'ds_read_b64 v[{40+2*j}:{41+2*j}], v46 offset:{512*j}','yr') for j in range(4)]
P+=zz
zc=[W('yr')]
for c in range(8):
    zc+=[unp(64,24+c//2,c%2)]
    for i in range(2):
        zc+=[unp(65,40+2*(c//2)+i,c%2),unp(66,16+c,1-i)]+L(f'v_fmac_f32 v65, v66, v64\nv_mul_f32 v{48+8*i+c}, v{48+8*i+c}, v65')
pw,rest=weave(pw,zc,5,start=1)
P+=flat(pw)+rest+[W('pw'),I('s_barrier')]+stamp('pbar')
for i in range(2):
    for wp in range(4):
        for j in range(2):
            r=64+32*i+8*wp+4*j
            P+=[I(f'ds_read_b128 v[{r}:{r+3}], v{8+j+2*i} offset:{RING+6144*wp+256*i}',f'pr{i}')]
P+=L('s_mov_b32 s58, 0xbfb8aa3b')
for i in range(2):
    b=64+32*i; x0=128+8*i; T=144+8*i
    for c in range(8): P+=[unp(x0+c,28+4*i+c//2,c%2)]
    P+=[W(f'pr{i}')]
    for k in range(4): P+=L(f'v_pk_add_f32 v[{b+2*k}:{b+2*k+1}], v[{b+2*k}:{b+2*k+1}], v[{b+8+2*k}:{b+9+2*k}]\nv_pk_add_f32 v[{b+16+2*k}:{b+17+2*k}], v[{b+16+2*k}:{b+17+2*k}], v[{b+24+2*k}:{b+25+2*k}]')
    for k in range(4): P+=L(f'v_pk_add_f32 v[{b+2*k}:{b+2*k+1}], v[{b+2*k}:{b+2*k+1}], v[{b+16+2*k}:{b+17+2*k}]')
    for c in range(8): P+=L(f'v_mul_f32 v{T+c}, s58, v{b+c}')
    for c in range(8): P+=L(f'v_exp_f32 v{T+c}, v{T+c}\nv_mul_f32 v{b+c}, v{b+c}, v{48+8*i+c}')
    P+=L(f'v_add_f32 v{T}, 1.0, v{T}')
    for c in range(8):
        P+=L(f'v_rcp_f32 v{T+c}, v{T+c}')
        if c<7: P+=L(f'v_add_f32 v{T+c+1}, 1.0, v{T+c+1}')
        if c: P+=L(f'v_fmac_f32 v{x0+c-1}, v{b+c-1}, v{T+c-1}')
    P+=L(f'v_cvt_pk_bf16_f32 v{T}, v{x0}, v{x0+1}\nv_fmac_f32 v{x0+7}, v{b+7}, v{T+7}')
    for k in range(1,4): P+=L(f'v_cvt_pk_bf16_f32 v{T+k}, v{x0+2*k}, v{x0+2*k+1}')
    P+=L(f'buffer_store_dwordx4 v[{T}:{T+3}], v3, {SO}, 0 offen offset:{896*i}')
P+=stamp('done')
if cfg.stamps: P+=L('s_waitcnt vmcnt(0)')+stamp('drain')
P+=stamp_store()+L('s_endpgm')
main_names=list(names)
nst[0]=1
Hh=L(f'''Lhelper:
s_lshr_b32 s59, s57, 1
s_lshl_b32 s59, s59, 2
s_add_u32 s59, s59, s58
s_lshl_b32 s60, s57, 2
s_add_u32 {sTB}, s60, s58
s_and_b32 s57, s57, 1
s_mul_i32 s57, s57, 7
s_cmp_ge_u32 s59, 7
s_cselect_b32 s60, 7, 0
s_cselect_b32 s61, 14336, 0
s_sub_u32 s60, s59, s60
s_add_u32 {sFB}, s57, s60
s_lshl_b32 s57, {sTB}, 6
s_lshl_b32 s58, {sW}, 4
s_add_u32 s62, s57, s58
v_lshrrev_b32 v14, 2, v1
v_add_u32 v5, s62, v14
v_and_b32 v4, 48, v2
s_movk_i32 s57, 896
v_mad_u32_u24 v4, v5, s57, v4
s_mul_i32 s57, {sW}, 112
v_lshrrev_b32 v14, 4, v1
v_add_u32 v14, s57, v14
v_and_b32 v6, 0xf0, v2
s_lshl_b32 s57, {sFB}, 8
v_add_u32 v6, s57, v6
s_movk_i32 s57, 3584
v_mad_u32_u24 v6, v14, s57, v6
s_waitcnt lgkmcnt(0)
s_cmp_ge_u32 s59, 7
s_cselect_b32 s28, s32, s28
s_cselect_b32 s29, s33, s29
s_cmp_ge_u32 s59, 14
s_cselect_b32 s30, 0, s30
s_cmp_lg_u32 s2, 30
s_cbranch_scc1 Lh1
s_cmp_lg_u32 {sW}, 0
s_cbranch_scc1 Lh1''')
Hh+=L(f'''v_lshlrev_b32 v14, 7, v1
v_mov_b32 v15, 0
buffer_store_dword v15, v14, {SWS}, 0 offen sc1
s_waitcnt vmcnt(0)
s_mov_b64 exec, 1
v_mov_b32 v15, 1
buffer_store_dword v15, off, {SDB}, 0 offset:128 sc1
s_mov_b64 exec, -1
Lh1:''',cnt=False)
for i in range(14): Hh+=L(f'buffer_load_dwordx4 v[{16+4*i}:{19+4*i}], v4, {SX}, 0 offen offset:{64*i}',f'hx{i}')
Hh+=L('s_mov_b32 s63, 0')
for i in range(28): Hh+=L(f'buffer_load_dwordx4 v[{80+4*i}:{83+4*i}], v6, {SWG}, s63 offen\ns_add_u32 s63, s63, 14336',f'hw{i}')
Hh+=L('s_mov_b32 s64, 0x3f803f80\ns_movk_i32 s65, 0x3f80\ns_mov_b32 s66, 0x3f800000')
for r in list(range(8,12))+list(range(72,80)): Hh+=L(f'v_mov_b32 v{r}, 0')
for i in range(14):
    Hh+=[W(f'hx{i}')]
    for d in range(4):
        r=16+4*i+d
        Hh+=L(f'v_dot2c_f32_bf16 v{8+d%2}, s64, v{r}\nv_dot2c_f32_bf16 v{10+d%2}, v{r}, v{r}')
Hh+=L('''s_nop 2
v_add_f32 v8, v8, v9
v_add_f32 v10, v10, v11
v_add_f32_dpp v8, v8, v8 quad_perm:[1,0,3,2] row_mask:0xf bank_mask:0xf
v_add_f32_dpp v10, v10, v10 quad_perm:[1,0,3,2] row_mask:0xf bank_mask:0xf
v_add_f32_dpp v8, v8, v8 quad_perm:[2,3,0,1] row_mask:0xf bank_mask:0xf
v_add_f32_dpp v10, v10, v10 quad_perm:[2,3,0,1] row_mask:0xf bank_mask:0xf
v_mul_f32 v8, 0xbb124925, v8
v_mul_f32 v10, 0x3b124925, v10
v_fma_f32 v10, -v8, v8, v10
v_max_f32 v10, 0, v10
v_cvt_pk_bf16_f32 v8, v8, v8
v_cvt_pk_bf16_f32 v10, v10, v10
v_and_b32 v10, 0xffff0000, v10
v_add_f32 v10, 0x3727c5ac, v10
v_cvt_pk_bf16_f32 v10, v10, v10
v_and_b32 v10, 0xffff0000, v10
v_sqrt_f32 v10, v10
v_lshlrev_b32 v5, 3, v5
v_cvt_pk_bf16_f32 v10, v10, v10
v_and_b32 v9, 0xffff0000, v10
s_mov_b32 exec_lo, 0x11111111
s_mov_b32 exec_hi, 0x11111111''')
Hh+=L(f's_movk_i32 s57, {STATS}\nbuffer_store_dwordx2 v[8:9], v5, {SWS}, s57 offen sc1\ns_mov_b64 exec, -1','hs')+stamp('hstat')
for i in range(28):
    Hh+=[W(f'hw{i}')]
    for d in range(4):
        r=80+4*i+d
        Hh+=L(f'v_dot2c_f32_bf16 v{72+2*d}, s65, v{r}\nv_dot2c_f32_bf16 v{73+2*d}, s66, v{r}')
Hh+=L('''v_lshlrev_b32 v14, 5, v0
s_nop 1
ds_write_b128 v14, v[72:75]
ds_write_b128 v14, v[76:79] offset:16
v_and_b32 v14, 127, v0
v_lshlrev_b32 v12, 2, v14
s_waitcnt lgkmcnt(0)
s_barrier''')
for i in range(16): Hh+=L(f'ds_read_b32 v{16+i}, v12 offset:{512*i}')
Hh+=L(f'''s_lshl_b32 s57, {sFB}, 7
v_add_lshl_u32 v14, v14, s57, 3
s_add_u32 s61, s61, {CS}
s_waitcnt lgkmcnt(0)''')
for st_ in (8,4,2,1):
    for i in range(st_): Hh+=L(f'v_add_f32 v{16+i}, v{16+i}, v{16+i+st_}')
Hh+=L(f'''v_and_b32 v17, 0xffff0000, v16
v_sub_f32 v16, v16, v17
v_and_b32 v18, 0xffff0000, v16
v_sub_f32 v16, v16, v18
v_lshrrev_b32 v17, 16, v17
v_or_b32 v18, v18, v17
v_lshrrev_b32 v19, 16, v16
s_cmp_ge_u32 s59, 14
s_cbranch_scc1 Lh2
s_cmp_ge_u32 {sW}, 2
s_cbranch_scc1 Lh2
buffer_store_dwordx2 v[18:19], v14, {SWS}, s61 offen sc1
Lh2:''')+stamp('hcs')+L('s_waitcnt vmcnt(0)\ns_barrier')+signal(SDB,'0')+stamp('hsig')
Hh+=stamp_store()+L('Lend:\ns_endpgm')
A,n1=resolve(P); B,n2=resolve(Hh)
hdr=open('cdna_kernels/'+NAME+'.s.ref').read().split('; Override')[0]
out=hdr+f'''; generated by a script: persistent single kernel, 224 GEMM/conv workgroups + 32 statistics workgroups
; @launch grid=(256,1,1) block=(256,1,1) lds=163840
.amdgcn_target "amdgcn-amd-amdhsa--gfx950"
.text
.globl {NAME}_kernel
.p2align 8
.type {NAME}_kernel,@function
{NAME}_kernel:
{text(A)}
{text(B)}
.section .rodata,"a"
.p2align 6
.amdhsa_kernel {NAME}_kernel
  .amdhsa_next_free_vgpr 512
  .amdhsa_next_free_sgpr 102
  .amdhsa_accum_offset 256
  .amdhsa_group_segment_fixed_size 0
  .amdhsa_kernarg_size 104
  .amdhsa_user_sgpr_count 2
  .amdhsa_user_sgpr_kernarg_segment_ptr 1
  .amdhsa_system_sgpr_workgroup_id_x 1
  .amdhsa_float_denorm_mode_32 3
.end_amdhsa_kernel
'''
if cfg.stamps: out=out.replace('; generated','; stamps: '+','.join(main_names)+' | '+','.join(['entry']+names[len(main_names):])+'\n; generated')
open(sys.argv[1],'w').write(out)
print('ops',len(A),len(B),'pads',n1,n2)
```
